```python
import torch

def _softmax(x, axis=-1):
    return torch.softmax(x, dim=axis)
def _gelu(x):
    return torch.nn.functional.gelu(x, approximate="tanh")
def _silu(x):
    return torch.nn.functional.silu(x)
def _sigmoid(x):
    return torch.sigmoid(x)
def _layernorm(x, axis=-1, eps=1e-5):
    m = x.mean(dim=axis, keepdim=True)
    v = x.var(dim=axis, keepdim=True, unbiased=False)
    return (x - m) / torch.sqrt(v + eps)
def _scatter_add(tgt, idx, src, axis=0):
    return tgt.clone().index_add_(axis, idx, src)
def _segment_sum(src, seg, n):
    out = torch.zeros((n,) + src.shape[1:], dtype=src.dtype)
    return out.index_add_(0, seg, src)
def _pad(x, pw):
    flat = tuple(v for pair in reversed(pw) for v in pair)
    return torch.nn.functional.pad(x, flat)

kernel_name = 'interleave_layers__sliding_local_dilated__mixer_token_mlp__prompt'

def setup_inputs():

    _w = (lambda a: (lambda t: t.to(torch.bfloat16) if t.is_floating_point() else t)(torch.as_tensor(a)))
    def _A_setup():
        B, S, D = 1, 2048, 512
        return {
            "x": _w((lambda *s: torch.randn(*s, dtype=torch.bfloat16) * 0.05)(B, S, D)),
            "wqkv": _w((lambda *s: torch.randn(*s, dtype=torch.bfloat16) * 0.05)(D, 3 * D)),
            "wo": _w((lambda *s: torch.randn(*s, dtype=torch.bfloat16) * 0.05)(D, D)),
        }
    _A_in = _A_setup()

    def _B_setup():
        B, S, D, F = 1, 2048, 512, 1792
        return {
            "x": _w((lambda *s: torch.randn(*s, dtype=torch.bfloat16) * 0.05)(B, S, D)),
            "w1": _w((lambda *s: torch.randn(*s, dtype=torch.bfloat16) * 0.8)(S, F) * (S ** -0.5)),
            "b1": _w((lambda *s: torch.randn(*s, dtype=torch.bfloat16) * 0.8)(F) * 0.02),
            "w2": _w((lambda *s: torch.randn(*s, dtype=torch.bfloat16) * 0.8)(F, S) * (F ** -0.5)),
            "b2": _w((lambda *s: torch.randn(*s, dtype=torch.bfloat16) * 0.8)(S) * 0.02),
        }
    _B_in = _B_setup()

    return {
        "A_x": _A_in["x"],
        "A_wqkv": _A_in["wqkv"],
        "A_wo": _A_in["wo"],
        "B_x": _B_in["x"],
        "B_w1": _B_in["w1"],
        "B_b1": _B_in["b1"],
        "B_w2": _B_in["w2"],
        "B_b2": _B_in["b2"],
    }

def reference(A_x, A_wqkv, A_wo, B_x, B_w1, B_b1, B_w2, B_b2):
    def _A_ref(x, wqkv, wo):
        B, S, D = x.shape
        H = 32; Dh = D // H
        W, dil = 8, 2
        qkv = (lambda x, *d: x.permute(*d))((x @ wqkv).reshape(B, S, 3, H, Dh), 2, 0, 3, 1, 4)
        q, k, v = qkv[0], qkv[1], qkv[2]
        scale = Dh ** -0.5
        pos = torch.arange(S)
        off = torch.arange(W) * dil
        idx = pos[:, None] - off[None, :]
        mask = idx >= 0
        idx_c = torch.where(mask, idx, 0).reshape(-1)
        kg = k[:, :, idx_c, :].reshape(B, H, S, W, Dh)
        vg = v[:, :, idx_c, :].reshape(B, H, S, W, Dh)
        logits = torch.einsum("bhsd,bhswd->bhsw", q, kg) * scale
        logits = torch.where(mask[None, None, :, :], logits, -1e9)
        attn = _softmax(logits, axis=-1)
        o = torch.einsum("bhsw,bhswd->bhsd", attn, vg)
        return (lambda x, *d: x.permute(*d))(o, 0, 2, 1, 3).reshape(B, S, D) @ wo

    def _B_ref(x, w1, b1, w2, b2):
        B, S, D = x.shape
        h = _layernorm(x, axis=-1)
        u = torch.einsum("bsd,sf->bdf", h, w1) + b1
        u = _gelu(u)
        y = torch.einsum("bdf,fs->bds", u, w2) + b2
        return (lambda x, *d: x.permute(*d))(y, 0, 2, 1)

    x = A_x
    x = x + _A_ref(_layernorm(x, axis=-1), A_wqkv, A_wo)
    x = x + _B_ref(_layernorm(x, axis=-1), B_w1, B_b1, B_w2, B_b2)
    x = x + _A_ref(_layernorm(x, axis=-1), A_wqkv, A_wo)
    x = x + _B_ref(_layernorm(x, axis=-1), B_w1, B_b1, B_w2, B_b2)
    return x
```

```python
import re

class Ins:
    __slots__ = ("text", "kind", "tok", "uncounted", "wait", "defs", "uses", "op", "comment")
    def __init__(self, text, kind=None, uncounted=False, wait=None):
        self.text = text; self.kind = kind; self.uncounted = uncounted; self.wait = wait
        self.tok = None; self.defs = None; self.uses = None; self.op = None

_REG = re.compile(r"\b([vas])(\d+)\b|\b([vas])\[(\d+):(\d+)\]|\b(vcc|exec|m0|scc)(_lo|_hi)?\b")

def regs_of(s):
    out = []
    for m in _REG.finditer(s):
        if m.group(1): out.append((m.group(1), int(m.group(2))))
        elif m.group(3):
            out += [(m.group(3), i) for i in range(int(m.group(4)), int(m.group(5)) + 1)]
        else: out.append((m.group(6), 0))
    return out

def split_ops(rest):
    ops = []; depth = 0; cur = ""
    for ch in rest:
        if ch == "[": depth += 1
        if ch == "]": depth -= 1
        if ch == "," and depth == 0:
            ops.append(cur.strip()); cur = ""
        else: cur += ch
    if cur.strip(): ops.append(cur.strip())
    return ops

TRANS = ("v_exp_f32", "v_log_f32", "v_rcp_f32", "v_rsq_f32", "v_sqrt_f32", "v_sin_f32", "v_cos_f32")

def analyze(i):
    t = i.text.split(";")[0].strip()
    if not t or t.endswith(":") or t.startswith("."):
        i.op = None; i.defs = []; i.uses = []; return
    p = t.split(None, 1)
    op = p[0]; rest = p[1] if len(p) > 1 else ""
    i.op = op
    ops = split_ops(rest)
    R = [regs_of(o) for o in ops]
    allr = [r for x in R for r in x]
    defs, uses = [], []
    if op.startswith("buffer_store") or op.startswith("ds_write") or op.startswith("global_store"):
        uses = allr
    elif op.startswith("buffer_atomic"):
        uses = allr
        if " sc0" in t: defs = R[0]
    elif op.startswith("buffer_load") and t.endswith(" lds"):
        uses = allr + [("m0", 0)]
    elif op.startswith("s_cmp") or op.startswith("s_bitcmp"):
        uses = allr; defs = [("scc", 0)]
    elif op.startswith("s_cbranch") or op in ("s_branch", "s_waitcnt", "s_barrier", "s_nop", "s_endpgm", "s_sleep", "s_setprio"):
        pass
    elif op.startswith("v_permlane") and "swap" in op:
        defs = allr; uses = allr
    elif op.startswith("v_fmac") or op.startswith("v_dot2c"):
        defs = R[0]; uses = allr
    elif op.startswith("v_cndmask"):
        defs = R[0]; uses = [r for x in R[1:] for r in x]
        if len(ops) == 3: uses.append(("vcc", 0))
    else:
        defs = R[0] if R else []
        uses = [r for x in R[1:] for r in x]
        if "_dpp" in op or "row_" in t: uses = uses + defs
    i.defs = defs; i.uses = uses

def is_valu(op): return op is not None and op.startswith("v_") and not op.startswith("v_mfma")
def is_mfma(op): return op is not None and op.startswith("v_mfma")
def is_vmem(op): return op is not None and (op.startswith("buffer_") or op.startswith("global_"))
def is_ds(op): return op is not None and op.startswith("ds_")
def mfma_passes(op): return 8 if "32x32" in op else 4

class Asm:
    def __init__(self):
        self.L = []
        self.nlabel = 0
    def __call__(self, text, **kw):
        out = None
        for line in text.split("\n"):
            line = line.strip()
            if not line: continue
            i = Ins(line, **kw)
            op = line.split()[0]
            if i.kind is None:
                if op.startswith("buffer_") or op.startswith("global_"): i.kind = "vm"
                elif op.startswith("ds_"): i.kind = "ds"
            self.L.append(i); out = i
        return out
    def label(self, name): self.L.append(Ins(name + ":"))
    def newlabel(self, p="L"):
        self.nlabel += 1; return f"{p}_{self.nlabel}"
    def wait(self, *toks):
        toks = [t for t in toks if t is not None]
        if toks: self.L.append(Ins("", wait=list(toks)))
    def comment(self, s): self.L.append(Ins("; " + s))
    def sub(self):
        a = Asm(); a.nlabel = self.nlabel + 1000; self.nlabel += 2000; return a
    def extend(self, other): self.L += other.L
    def interleave(self, main, side, start=0, every=1, per=1):
        side = list(side.L); n = 0; out = []
        for i in main.L:
            out.append(i)
            if i.text.startswith("v_mfma"):
                n += 1
                if n > start and (n - start) % every == 0:
                    k = 0
                    while side and k < per:
                        x = side.pop(0); out.append(x)
                        if x.text and not x.text.startswith(";"): k += 1
        out += side
        self.L += out
    def resolve_waits(self):
        pos = {"vm": 0, "ds": 0}; done = {"vm": 0, "ds": 0}; seq = {}
        out = []
        for i in self.L:
            if i.wait is not None:
                need = {}
                for t in i.wait:
                    k = t.kind; s = seq[id(t)]
                    if s >= done[k]:
                        n = pos[k] - s - 1
                        need[k] = min(need.get(k, 1 << 30), n)
                parts = []
                if "vm" in need:
                    n = min(need["vm"], 63); parts.append(f"vmcnt({n})"); done["vm"] = max(done["vm"], pos["vm"] - n)
                if "ds" in need:
                    n = min(need["ds"], 15); parts.append(f"lgkmcnt({n})"); done["ds"] = max(done["ds"], pos["ds"] - n)
                if parts: out.append(Ins("s_waitcnt " + " ".join(parts)))
                continue
            if i.kind in ("vm", "ds") and not i.uncounted:
                seq[id(i)] = pos[i.kind]; pos[i.kind] += 1
                if i.kind == "vm" and pos["vm"] - done["vm"] > 63:
                    pass
            if i.kind == "syncvm": done["vm"] = pos["vm"]
            if i.kind == "syncds": done["ds"] = pos["ds"]
            if i.kind == "syncall": done["vm"] = pos["vm"]; done["ds"] = pos["ds"]
            out.append(i)
        self.L = out
    def fix_hazards(self):
        out = []
        hist = []
        clock = 0
        for i in self.L:
            analyze(i)
            if i.op is None:
                out.append(i); continue
            need = 0
            U = set(i.uses); Df = set(i.defs)
            op = i.op
            for (p, t) in reversed(hist):
                dist = clock - t - 1
                if dist > 20: break
                PD = set(p.defs); req = 0
                if is_valu(p.op):
                    vd = {r for r in PD if r[0] in "va" and r[0] != "vcc"}
                    sd = {r for r in PD if r[0] in ("s", "vcc")}
                    if is_mfma(op) and (vd & U): req = max(req, 2)
                    if op.startswith("v_permlane") and (vd & U): req = max(req, 2)
                    if ("_dpp" in op or " row_" in i.text) and (vd & U): req = max(req, 2)
                    if op in ("v_readfirstlane_b32", "v_readlane_b32") and (vd & U): req = max(req, 1)
                    if sd & U:
                        if is_valu(op) or is_mfma(op): req = max(req, 2)
                        if is_vmem(op): req = max(req, 5)
                        if op in ("v_readlane_b32", "v_writelane_b32"): req = max(req, 4)
                    if p.op.replace("_e32", "").replace("_e64", "") in TRANS and (is_valu(op) or is_mfma(op)) and (vd & U): req = max(req, 1)
                    if ("sdwa" in p.op or "op_sel" in p.text) and is_valu(op) and (vd & (U | Df)): req = max(req, 1)
                if is_mfma(p.op):
                    ps = mfma_passes(p.op)
                    big = 8 if ps == 4 else 12
                    ovl = 6 if ps == 4 else 10
                    if is_mfma(op):
                        ops = split_ops(i.text.split(None, 1)[1])
                        ab = set(regs_of(ops[1])) | set(regs_of(ops[2])); c = regs_of(ops[3])
                        if PD & ab: req = max(req, big)
                        if PD & set(c):
                            if not (list(p.defs) == list(c) and mfma_passes(op) == ps): req = max(req, ovl)
                        elif PD & Df: req = max(req, ovl)
                    else:
                        if PD & (U | Df): req = max(req, big)
                        pops = split_ops(p.text.split(None, 1)[1])
                        pc = set(regs_of(pops[3]))
                        if is_valu(op) and (pc & Df): req = max(req, 3 if ps == 4 else 7)
                if p.op.startswith("s_") and ("m0", 0) in PD and ("m0", 0) in U: req = max(req, 1)
                if (p.op.startswith("buffer_store") or p.op.startswith("buffer_atomic")) and ("x4" in p.op or "x3" in p.op):
                    data = set(regs_of(split_ops(p.text.split(None, 1)[1])[0]))
                    if data & Df: req = max(req, 2)
                need = max(need, req - dist)
            while need > 0:
                n = min(need, 16)
                x = Ins(f"s_nop {n-1}"); analyze(x); out.append(x); clock += n; need -= n
            out.append(i)
            hist.append((i, clock))
            if op == "s_nop": clock += int(i.text.split()[1]) + 1
            else: clock += 1
            if len(hist) > 40: hist.pop(0)
        self.L = out
    def text(self):
        self.resolve_waits(); self.fix_hazards()
        return "\n".join((i.text if i.text.endswith(":") else "  " + i.text) for i in self.L) + "\n"

def vr(b, n=1, p="v"): return f"{p}{b}" if n == 1 else f"{p}[{b}:{b+n-1}]"
def ar(b, n=1): return vr(b, n, "a")
def sr(b, n=1): return vr(b, n, "s")
```

```python
import sys, struct
sys.path.insert(0, "dev")
from asmlib import *

NAME = "interleave_layers__sliding_local_dilated__mixer_token_mlp__prompt"
K1 = 1024
WS_CNT = 0
WS_ST = [0x40000, 0x80000]
def WS_L(L): return 0x200000 + L * 0xA00000
def WS_O(L): return WS_L(L)
def WS_X1(L): return WS_L(L) + 0x200000
def WS_H(L): return WS_L(L) + 0x400000
def WS_U(L): return WS_L(L) + 0x600000
def WS_X2(L): return WS_L(L) + 0x800000
LDS_A = 0
LDS_B = 80 * K1
LDS_TOTAL = 160 * K1
RING_W = 20 * K1
RING_SLOTS = 10
QSLOTS = 6
LDS_MISC = 64 * K1
S_AX, S_WQ, S_WO, S_W1, S_W2, S_WS, S_OUT, S_B1, S_B2, S_DBG = 8, 12, 16, 20, 24, 28, 32, 36, 40, 44
sXCD, sJ, sRB, sHG, sDT3, sFT, sST, sW, sWA, sWB = [f"s{i}" for i in range(70, 80)]
sT0, sT1, sT2, sT3, sT4, sT5, sT6, sT7 = [f"s{i}" for i in range(48, 56)]
sRING = "s56"; sSPIN = "s57"; sB0 = "s58"; sB1_ = "s59"; sXM = "s60"; sERR = "s61"
sM1, sM2, sM3, sMD = "s[80:81]", "s[82:83]", "s[84:85]", "s[86:87]"
sE4M = "s88"
_pv = iter(range(216, 256))
vL16 = next(_pv); vL16H = next(_pv); vXS = next(_pv); vXSH = next(_pv); vXG0 = next(_pv)
vDW1 = next(_pv); vDW2 = next(_pv); vDWO = next(_pv); vDQ = next(_pv)
vTR0 = next(_pv); vTR1 = next(_pv); vTWO = next(_pv)
vSIG1 = next(_pv); vSIG2 = next(_pv); vSIG3 = next(_pv); vSIG4 = next(_pv); vPOLL = next(_pv)
vXL = next(_pv); vLANE = next(_pv); vOST = next(_pv)
vONE = 236
vCSQ = 240; vCSK = 244; vCSV = 248
vRW = 252
vRR = 255
assert vOST < 236

def f2u(x): return struct.unpack("<I", struct.pack("<f", x))[0]
def srd(b): return f"s[{b}:{b+3}]"

class Alloc:
    def __init__(self, lo=8, hi=216): self.p = lo; self.hi = hi
    def get(self, n, align=2):
        self.p = (self.p + align - 1) // align * align
        r = self.p; self.p += n
        assert self.p <= self.hi, "out of vgprs"
        return r

def mfma32(A, d, a, b, c): return A(f"v_mfma_f32_32x32x16_bf16 {vr(d,16)}, {a}, {b}, {c}")
def mfma16(A, d, a, b, c): return A(f"v_mfma_f32_16x16x32_bf16 {vr(d,4)}, {a}, {b}, {c}")
def mfma16k16(A, d, a, b, c): return A(f"v_mfma_f32_16x16x16_bf16 {vr(d,4)}, {a}, {b}, {c}")

def dma(A, srdb, voff, soff_base, soff_add, m0_base, m0_add, flags="", imm=0):
    if m0_base is None: A(f"s_mov_b32 m0, {m0_add}")
    else: A(f"s_add_u32 m0, {m0_base}, {m0_add}")
    if soff_add: A(f"s_add_u32 {sT7}, {soff_base}, {soff_add}"); so = sT7
    else: so = soff_base
    o = f" offset:{imm}" if imm else ""
    return A(f"buffer_load_dwordx4 v{voff}, {srd(srdb)}, {so} offen{o}{' ' + flags if flags else ''} lds")

class Gen:
    def __init__(self, stop=None, pollmode="all", n1=14, prefetch=True):
        self.A = Asm(); self.stop = stop; self.pollmode = pollmode; self.n1 = n1; self.prefetch = prefetch

    def prologue(self):
        A = self.A
        A("s_cmp_ge_u32 s2, 256\ns_cbranch_scc1 L_end")
        A("s_load_dwordx16 s[48:63], s[0:1], 0")
        A("s_load_dwordx4 s[64:67], s[0:1], 64")
        A("s_load_dwordx2 s[68:69], s[0:1], 80")
        A(f"s_and_b32 {sXCD}, s2, 7\ns_lshr_b32 {sJ}, s2, 3")
        A(f"s_lshl_b32 s3, {sXCD}, 2\ns_lshr_b32 s4, {sJ}, 3\ns_add_u32 {sRB}, s3, s4\ns_and_b32 {sHG}, {sJ}, 7")
        A(f"s_and_b32 s3, {sXCD}, 1\ns_lshl_b32 s3, s3, 2\ns_and_b32 s4, {sJ}, 3\ns_add_u32 {sDT3}, s3, s4")
        A(f"s_lshr_b32 s3, {sXCD}, 1\ns_lshr_b32 s4, {sJ}, 2\ns_mul_i32 s5, s3, 7\ns_add_u32 {sFT}, s5, s4\ns_lshl_b32 s5, s3, 3\ns_add_u32 {sST}, s5, s4")
        A(f"v_lshrrev_b32 v1, 6, v0\nv_and_b32 v{vLANE}, 63, v0")
        A(f"v_readfirstlane_b32 {sW}, v1")
        A(f"v_lshlrev_b32 v{vL16}, 4, v{vLANE}")
        A(f"v_add_u32 v{vL16H}, 0x10000, v{vL16}")
        A(f"s_lshr_b32 {sWA}, {sW}, 1\ns_and_b32 {sWB}, {sW}, 1")
        l = vLANE
        A(f"v_and_b32 v2, 15, v{l}\nv_lshrrev_b32 v3, 4, v{l}\nv_lshrrev_b32 v4, 3, v{l}\nv_and_b32 v5, 7, v{l}\nv_lshrrev_b32 v6, 5, v{l}")
        A(f"v_lshlrev_b32 v7, 10, v2\nv_lshl_add_u32 v{vXG0}, v3, 4, v7")
        A("s_waitcnt lgkmcnt(0)")
        def mk(b, p, n):
            A(f"s_mov_b32 s{b}, s{p}\ns_mov_b32 s{b+1}, s{p+1}\ns_mov_b32 s{b+2}, {n}\ns_mov_b32 s{b+3}, 0x00020000")
        mk(S_AX, 48, 2048 * 512 * 2); mk(S_WQ, 50, 512 * 1536 * 2); mk(S_WO, 52, 512 * 512 * 2)
        mk(S_W1, 56, 2048 * 1792 * 2); mk(S_B1, 58, 1792 * 2); mk(S_W2, 60, 1792 * 2048 * 2); mk(S_B2, 62, 2048 * 2)
        mk(S_OUT, 64, 2048 * 512 * 2); mk(S_DBG, 66, 256); mk(S_WS, 68, 0x10000000)
        A(f"s_mov_b32 {sERR}, 0")
        A(f"s_lshl_b32 s3, s2, 10\nv_mov_b32 v{vPOLL}, s3")
        A(f"v_lshl_add_u32 v7, v5, 7, v{vPOLL}\nv_mov_b32 v8, 0\nv_mov_b32 v9, -1\nv_lshlrev_b32 v10, 2, v{l}")
        t = A(f"buffer_store_dword v8, v7, {srd(S_WS)}, 0 offen sc1")
        self.st_slot(sT0)
        for L in range(2):
            A(f"s_add_u32 {sT1}, {sT0}, {WS_ST[L]}")
            t = A(f"buffer_store_dword v9, v10, {srd(S_WS)}, {sT1} offen sc1")
        self.init_tok = t
        A(f"s_lshl_b32 {sXM}, {sW}, 10")
        self.x_dma(0)
        A(f"s_lshl_b32 s3, {sW}, 10\nv_add_u32 v{vXS}, s3, v{vL16}\nv_add_u32 v{vXSH}, s3, v{vL16H}")
        A("v_and_b32 v7, 1, v3\nv_lshlrev_b32 v7, 2, v7\nv_xor_b32 v7, v5, v7\nv_lshlrev_b32 v7, 4, v7")
        for v, st in ((vDW1, 3584), (vDW2, 4096), (vDWO, 1024)):
            A(f"v_mul_u32_u24 v8, {st}, v4\nv_add_u32 v{v}, v8, v7")
        A(f"s_lshl_b32 s3, {sW}, 3\nv_add_u32 v8, s3, v4")
        self.swz(9, 8, 10)
        A("v_lshlrev_b32 v9, 1, v9\nv_xor_b32 v9, v5, v9\nv_lshlrev_b32 v9, 4, v9")
        A(f"v_mul_u32_u24 v8, 3072, v8\nv_add_u32 v{vDQ}, v8, v9")
        A("v_lshrrev_b32 v7, 2, v2")
        A("v_lshl_add_u32 v8, v6, 2, v7\nv_lshlrev_b32 v8, 7, v8")
        A("v_and_b32 v9, 1, v3\nv_lshl_add_u32 v8, v9, 5, v8")
        A(f"v_and_b32 v9, 3, v{l}\nv_lshl_add_u32 v8, v9, 3, v8")
        A(f"v_lshrrev_b32 v9, 1, v7\nv_xor_b32 v9, {sWA}, v9\nv_lshl_add_u32 v8, v9, 6, v8")
        A(f"s_mul_i32 {sRING}, {sW}, {RING_W}\ns_add_u32 {sRING}, {sRING}, {LDS_B}")
        A(f"v_add_u32 v{vTR0}, {sRING}, v8\nv_xor_b32 v{vTR1}, 64, v{vTR0}")
        A(f"v_add_u32 v{vTWO}, {LDS_B}, v8")
        A(f"s_and_b32 s3, {sJ}, 24\nv_add_u32 v7, s3, v5\nv_lshlrev_b32 v7, 3, v7\nv_add_u32 v7, {sXCD}, v7\nv_lshlrev_b32 v{vSIG1}, 10, v7")
        for v, dt in ((vSIG2, sHG), (vSIG3, sDT3)):
            A(f"s_and_b32 s3, {dt}, 3\ns_lshl_b32 s3, s3, 3\ns_lshr_b32 s4, {dt}, 2\ns_add_u32 s3, s3, s4")
            A(f"v_lshlrev_b32 v7, 5, v5\nv_and_b32 v8, 3, v4\nv_lshl_add_u32 v7, v8, 1, v7\nv_add_u32 v7, s3, v7\nv_lshlrev_b32 v{v}, 10, v7")
        A(f"v_and_b32 v7, 1, v4\nv_add_u32 v7, {sST}, v7\nv_and_b32 v8, 3, v7\nv_lshlrev_b32 v8, 3, v8\nv_add_u32 v8, v8, v5\nv_lshlrev_b32 v8, 3, v8")
        A(f"v_lshrrev_b32 v7, 2, v7\nv_add_u32 v7, v7, v8\nv_lshlrev_b32 v{vSIG4}, 10, v7")
        A(f"s_mov_b32 s3, 0xffff\ns_cmp_eq_u32 {sST}, 31\ns_cselect_b32 {sE4M}, 0xff, s3")
        A(f"v_and_b32 v7, 1, v3\nv_lshlrev_b32 v7, 14, v7\nv_lshl_add_u32 v7, v2, 4, v7\nv_lshl_add_u32 v{vXL}, v6, 8, v7")
        A(f"v_lshl_add_u32 v7, v6, 4, v2\nv_and_b32 v8, 1, v3\nv_lshl_add_u32 v7, v8, 5, v7\nv_lshlrev_b32 v{vOST}, 4, v7")
        for i in range(4): A(f"v_mov_b32 v{vONE+i}, 0x3f803f80")
        for i in range(1, 4):
            A(f"s_xor_b32 s3, {sW}, {i}\ns_mul_i32 s3, s3, 12288\ns_add_u32 s3, s3, {(i-1)*4096}\nv_add_u32 v{vRW+i-1}, s3, v{vL16}")
        A(f"s_mul_i32 s3, {sW}, 12288\nv_add_u32 v{vRR}, s3, v{vL16}")
        A(f"v_and_b32 v7, 3, v{l}")
        A(f"v_cmp_eq_u32 {sM1}, 1, v7\nv_cmp_eq_u32 {sM2}, 2, v7\nv_cmp_eq_u32 {sM3}, 3, v7")
        A(f"v_lshrrev_b32 v7, 2, v2\nv_cmp_eq_u32 {sMD}, v3, v7")

    def swz(self, d, row, t):
        A = self.A
        A(f"v_lshrrev_b32 v{d}, 2, v{row}\nv_lshrrev_b32 v{t}, 3, v{row}\nv_xor_b32 v{d}, v{d}, v{t}\nv_and_b32 v{d}, 1, v{d}\nv_lshlrev_b32 v{d}, 1, v{d}")
        A(f"v_bfe_u32 v{t}, v{row}, 1, 1\nv_or_b32 v{d}, v{d}, v{t}")

    def st_slot(self, s):
        A = self.A
        A(f"s_lshl_b32 {s}, {sRB}, 1\ns_add_u32 {s}, {s}, {sWB}\ns_lshl_b32 {s}, {s}, 4\ns_lshl_b32 {sT6}, {sHG}, 1\ns_add_u32 {s}, {s}, {sT6}\ns_add_u32 {s}, {s}, {sWA}\ns_lshl_b32 {s}, {s}, 8")

    def signal(self, toks, vsig, mask, edge, first=False):
        A = self.A
        A.wait(*toks)
        A("s_barrier")
        lab = A.newlabel("L_sig")
        A(f"s_cmp_lg_u32 {sW}, 0\ns_cbranch_scc1 {lab}")
        if first:
            lp = A.newlabel("L_ini")
            A(f"v_lshlrev_b32 v1, 2, v{vLANE}\ns_mov_b32 {sSPIN}, 0")
            A.label(lp)
            A(f"buffer_load_dword v2, v1, {srd(S_DBG)}, 0 offen sc1", uncounted=True)
            A(f"s_add_u32 {sSPIN}, {sSPIN}, 1\ns_cmp_gt_u32 {sSPIN}, 0x8000\ns_cbranch_scc1 {lp}_x")
            A("s_waitcnt vmcnt(0)")
            A(f"v_cmp_ne_u32 vcc, 4, v2\ns_cbranch_vccnz {lp}")
            A.label(lp + "_x")
        A(f"v_mov_b32 v1, 1\ns_mov_b32 exec_lo, {mask}\ns_mov_b32 exec_hi, 0")
        A(f"buffer_atomic_add v1, v{vsig}, {srd(S_WS)}, 0 offen offset:{edge*128} sc1", uncounted=True)
        A("s_mov_b64 exec, -1")
        A.label(lab)

    def poll(self, edge, target):
        A = self.A
        lp = A.newlabel("L_poll")
        if self.pollmode == "one":
            A(f"s_cmp_lg_u32 {sW}, 1\ns_cbranch_scc1 {lp}_x")
        A(f"s_mov_b32 {sSPIN}, 0")
        A.label(lp)
        A(f"buffer_load_dword v1, v{vPOLL}, {srd(S_WS)}, 0 offen offset:{edge*128} sc1", uncounted=True)
        A(f"s_add_u32 {sSPIN}, {sSPIN}, 1\ns_cmp_gt_u32 {sSPIN}, 0x8000\ns_cbranch_scc1 {lp}_x")
        A("s_waitcnt vmcnt(0)")
        A(f"v_cmp_gt_u32 vcc, {target}, v1\ns_cbranch_vccnz {lp}")
        A.label(lp + "_x")
        if self.pollmode == "one": A("s_barrier")

    def x_dma(self, L):
        A = self.A
        ks = 64 if L == 0 else 1024
        base = 0 if L == 0 else WS_X2(L - 1)
        A(f"s_lshl_b32 {sT0}, {sRB}, 16\ns_mul_i32 {sT1}, {sW}, {ks}\ns_add_u32 {sB1_}, {sT0}, {sT1}")
        A(f"s_sub_u32 {sT0}, {sT0}, 16384\ns_max_i32 {sT0}, {sT0}, 0\ns_add_u32 {sB0}, {sT0}, {sT1}")
        self.xtok = []
        for c in range(4):
            for b in range(5):
                sb = sB0 if b == 0 else sB1_
                add = base + c * 4 * ks + (0 if b == 0 else (b - 1) * 16384)
                t = dma(A, S_AX if L == 0 else S_WS, vXG0 if L == 0 else vL16, sb, add, sXM, LDS_A + b * 16384 + c * 4096,
                        flags="" if L == 0 else "sc1")
            self.xtok.append(t)

    def stage_wqkv(self, L):
        A = self.A
        R = Alloc()
        tq = R.get(4)
        l = vLANE
        A(f"v_lshrrev_b32 v1, 4, v{l}\nv_bfe_u32 v2, v{l}, 2, 2\nv_and_b32 v3, 3, v{l}")
        for half in range(2):
            if L == 0:
                A(f"v_lshl_add_u32 v4, v1, 3, v2\nv_add_u32 v4, {4*half}, v4")
            else:
                A(f"v_lshrrev_b32 v4, 1, v1\nv_lshlrev_b32 v4, 4, v4\nv_and_b32 v5, 1, v1\nv_lshl_add_u32 v4, v5, 2, v4\nv_add_u32 v4, v4, v2\nv_add_u32 v4, {8*half}, v4")
            self.swz(5, 4, 6)
            A(f"v_xor_b32 v5, {sW}, v5\nv_lshlrev_b32 v5, 5, v5\nv_lshl_add_u32 v5, v4, 7, v5\nv_lshl_add_u32 v5, v3, 3, v5")
            A(f"v_add_u32 v{tq+2*half}, {LDS_B}, v5\nv_add_u32 v{tq+2*half+1}, {LDS_B + 4*12288}, v5")
        A(f"s_lshl_b32 {sB0}, {sHG}, 7")
        A(f"s_lshl_b32 {sT5}, {sW}, 10\ns_add_u32 {sT5}, {sT5}, {LDS_B}")
        dt = {}
        def issue(i):
            for t in range(3):
                dt[i] = dma(A, S_WQ, vDQ, sB0, i * 32 * 3072 + t * 1024, sT5, (i % QSLOTS) * 12288 + t * 4096)
        for i in range(QSLOTS - 1): issue(i)
        if L == 0 and self.prefetch: self.l2_prefetch()
        rd = {}
        def colsum(i):
            if L != 0: return
            c = lambda r: vr(r, 4) if i else "0"
            mfma16(A, vCSQ, ar(12 * i, 4), vr(vONE, 4), c(vCSQ))
            mfma16(A, vCSK, ar(12 * i + 4, 4), vr(vONE, 4), c(vCSK))
            mfma16(A, vCSV, vr(vONE, 4), ar(12 * i + 8, 4), c(vCSV))
        for i in range(16):
            A.wait(dt[i], rd.get(i - 1), self.init_tok if (L == 0 and i == 0) else None)
            A("s_barrier")
            if L == 0 and i == 0:
                lab = A.newlabel("L_arr")
                A(f"s_cmp_lg_u32 {sW}, 0\ns_cbranch_scc1 {lab}")
                A(f"s_and_b32 s3, s2, 63\ns_lshl_b32 s3, s3, 2\nv_mov_b32 v1, s3\nv_mov_b32 v2, 1\ns_mov_b64 exec, 1")
                A(f"buffer_atomic_add v2, v1, {srd(S_DBG)}, 0 offen sc1", uncounted=True)
                A("s_mov_b64 exec, -1")
                A.label(lab)
            if i - 1 + QSLOTS < 16: issue(i - 1 + QSLOTS)
            sl = i % QSLOTS; hi = 1 if sl >= 4 else 0
            for t in range(3):
                for half in range(2):
                    off = (sl - 4 * hi) * 12288 + t * 4096
                    rd[i] = A(f"ds_read_b64_tr_b16 {ar(12*i+4*t+2*half, 2)}, v{tq+2*half+hi} offset:{off}")
            if i > 0: colsum(i - 1)
        A.wait(rd[15]); colsum(15)
        A("s_barrier")

    def l2_prefetch(self):
        pass

    def wo_dma(self):
        A = self.A
        A(f"s_lshl_b32 {sT0}, {sW}, 17\ns_lshl_b32 {sT1}, {sHG}, 7\ns_add_u32 {sB0}, {sT0}, {sT1}")
        A(f"s_lshl_b32 {sT5}, {sW}, 14\ns_add_u32 {sT5}, {sT5}, {LDS_B}")
        for i in range(16):
            self.wotok = dma(A, S_WO, vDWO, sB0, i * 8192, sT5, i * 1024)

    def p1(self, L):
        A = self.A
        R = Alloc()
        XB = [[R.get(4) for b in range(5)] for _ in range(2)]
        XS = [R.get(4) for b in range(5)]
        Q = {b: R.get(4) for b in range(1, 5)}
        Kk = [R.get(4) for b in range(5)]
        V = [R.get(4) for b in range(5)]
        SU = [R.get(4) for b in range(5)]
        GR = [R.get(4) for b in range(5)]
        MO = R.get(4); MP = R.get(4); MP1 = R.get(4)
        l = vLANE
        A(f"v_and_b32 v1, 15, v{l}\nv_lshrrev_b32 v2, 4, v{l}\nv_lshlrev_b32 v2, 2, v2\nv_sub_u32 v1, v1, v2\nv_mov_b32 v3, {hex(f2u(-1e30))}\nv_mov_b32 v6, 0")
        A(f"s_cmp_eq_u32 {sRB}, 0\ns_cselect_b32 {sT0}, {hex(f2u(-1e30))}, 0")
        for j in range(4):
            A(f"v_subrev_u32 v4, {j}, v1\nv_and_b32 v5, 0x80000001, v4")
            A(f"v_cmp_eq_u32 vcc, 0, v5\nv_cndmask_b32 v{MO+j}, v3, v6, vcc")
            A(f"v_cmp_eq_u32 vcc, 0x80000000, v5\nv_cndmask_b32 v{MP+j}, v3, v6, vcc")
            A(f"v_min_f32 v{MP1+j}, {sT0}, v{MP+j}")
        if L > 0:
            A(f"s_cmp_eq_u32 {sRB}, 0\ns_cselect_b32 {sT4}, 8, 16")
            self.poll(4 * (L - 1) + 3, sT4)
            self.x_dma(L)
        self.wo_dma()
        def rdx(dst, b, ks):
            off = (b * 16 + ks) * 1024
            return A(f"ds_read_b128 {vr(dst,4)}, v{vL16 if off < 65536 else vL16H} offset:{off & 65535}")
        def rds(b, c):
            off = b * 16384 + c * 4096
            return A(f"ds_read_b128 {vr(XS[b],4)}, v{vXS if off < 65536 else vXSH} offset:{off & 65535}")
        rt = {}; st = {}
        def chunk_ready(c):
            A.wait(self.xtok[c])
            st[c] = [rds(b, c) for b in range(5)]
            A("s_barrier")
        def reads(ks): rt[ks] = [rdx(XB[ks & 1][b], b, ks) for b in range(5)]
        def stats(c):
            for b in range(5):
                A.wait(st[c][b])
                mfma16(A, SU[b], vr(vONE, 4), vr(XS[b], 4), vr(SU[b], 4) if c else "0")
                mfma16(A, GR[b], vr(XS[b], 4), vr(XS[b], 4), vr(GR[b], 4) if c else "0")
        def mm(ks):
            for b in range(5):
                A.wait(rt[ks][b])
                x = vr(XB[ks & 1][b], 4)
                c = lambda r: vr(r, 4) if ks else "0"
                if b: mfma16(A, Q[b], ar(12 * ks, 4), x, c(Q[b]))
                mfma16(A, Kk[b], ar(12 * ks + 4, 4), x, c(Kk[b]))
                mfma16(A, V[b], x, ar(12 * ks + 8, 4), c(V[b]))
        chunk_ready(0); reads(0); stats(0)
        for ks in range(16):
            if ks % 4 == 3 and ks < 15: chunk_ready(ks // 4 + 1)
            if ks < 15: reads(ks + 1)
            mm(ks)
            if ks % 4 == 3 and ks < 15: stats(ks // 4 + 1)
        STP = LDS_B + 64 * K1
        ABP = STP + 4 * 640
        A(f"s_mul_i32 {sT0}, {sW}, 640\nv_and_b32 v1, 15, v{l}\nv_lshlrev_b32 v1, 3, v1\nv_add_u32 v2, {sT0}, v1\nv_add_u32 v2, {STP}, v2")
        wt = []
        for b in range(5):
            g = GR[b]
            A(f"v_cndmask_b32 v{SU[b]+1}, v{g}, v{g+1}, {sM1}\nv_cndmask_b32 v{SU[b]+1}, v{SU[b]+1}, v{g+2}, {sM2}\nv_cndmask_b32 v{SU[b]+1}, v{SU[b]+1}, v{g+3}, {sM3}")
        A(f"s_mov_b64 exec, {sMD}")
        for b in range(5): wt.append(A(f"ds_write_b64 v2, {vr(SU[b],2)} offset:{b*128}"))
        A("s_mov_b64 exec, -1")
        A.wait(*wt); A("s_barrier")
        P = [XB[0][0], XB[1][0]]
        A(f"v_lshlrev_b32 v3, 3, v{l}\nv_add_u32 v3, {STP}, v3\nv_add_u32 v4, {STP + 512}, v1")
        rr = []
        for ps in range(2):
            for w in range(4):
                rr.append(A(f"ds_read_b64 {vr(P[ps]+2*w,2)}, v{3+ps} offset:{w*640}"))
        A(f"v_lshlrev_b32 v5, 3, v{l}\nv_add_u32 v5, {sT0}, v5\nv_add_u32 v5, {ABP}, v5")
        A(f"v_add_u32 v6, {sT0}, v1\nv_add_u32 v6, {ABP}, v6")
        A.wait(*rr)
        wt = []
        for ps in range(2):
            p = P[ps]
            A(f"v_add_f32 v{p}, v{p}, v{p+2}\nv_add_f32 v{p+1}, v{p+1}, v{p+3}\nv_add_f32 v{p+4}, v{p+4}, v{p+6}\nv_add_f32 v{p+5}, v{p+5}, v{p+7}")
            A(f"v_add_f32 v{p}, v{p}, v{p+4}\nv_add_f32 v{p+1}, v{p+1}, v{p+5}")
            A(f"v_mul_f32 v{p}, {hex(f2u(1/512))}, v{p}\nv_mul_f32 v{p+1}, {hex(f2u(1/512))}, v{p+1}")
            A(f"v_fma_f32 v{p+1}, -v{p}, v{p}, v{p+1}\nv_max_f32 v{p+1}, 0, v{p+1}\nv_add_f32 v{p+1}, {hex(f2u(1e-5))}, v{p+1}")
            A(f"v_rsq_f32 v{p+2}, v{p+1}")
            A(f"v_mul_f32 v{p+3}, v{p}, v{p+2}\nv_sub_f32 v{p+3}, 0, v{p+3}")
            wt.append(A(f"ds_write_b64 v{5+ps}, {vr(p+2,2)} offset:{512*ps}"))
        A.wait(*wt)
        AB1 = [SU[b] for b in range(5)]
        AB2 = [XB[0][2], XB[0][4] , XB[1][2], XB[1][4], XS[1]]
        A(f"v_lshrrev_b32 v7, 4, v{l}\nv_lshlrev_b32 v7, 5, v7\nv_add_u32 v7, {sT0}, v7\nv_add_u32 v7, {ABP}, v7")
        r1 = [A(f"ds_read_b64 {vr(AB1[b],2)}, v6 offset:{b*128}") for b in range(5)]
        r2 = []
        for b in range(5):
            A(f"ds_read_b128 {vr(AB2[b],4)}, v7 offset:{b*128}")
            r2.append(A(f"ds_read_b128 {vr(AB2[b]+4,4)}, v7 offset:{b*128+16}"))
        VP = R.get(10)
        cq = 0.25 * 1.4426950408889634
        for b in range(5):
            A.wait(r1[b])
            a, bb = AB1[b], AB1[b] + 1
            for j in range(4):
                A(f"v_mul_f32 v1, v{bb}, v{vCSK+j}\nv_fma_f32 v{Kk[b]+j}, v{a}, v{Kk[b]+j}, v1")
            A(f"v_cvt_pk_bf16_f32 v{GR[b]+2}, v{Kk[b]}, v{Kk[b]+1}\nv_cvt_pk_bf16_f32 v{GR[b]+3}, v{Kk[b]+2}, v{Kk[b]+3}")
            if b:
                A(f"v_mul_f32 v{a}, {hex(f2u(cq))}, v{a}\nv_mul_f32 v{bb}, {hex(f2u(cq))}, v{bb}")
                for j in range(4):
                    A(f"v_mul_f32 v1, v{bb}, v{vCSQ+j}\nv_fma_f32 v{Q[b]+j}, v{a}, v{Q[b]+j}, v1")
                A(f"v_cvt_pk_bf16_f32 v{GR[b]}, v{Q[b]}, v{Q[b]+1}\nv_cvt_pk_bf16_f32 v{GR[b]+1}, v{Q[b]+2}, v{Q[b]+3}")
        for b in range(1, 5):
            mfma16k16(A, Q[b], vr(GR[b-1]+2, 2), vr(GR[b], 2), vr(MP1 if b == 1 else MP, 4))
            mfma16k16(A, Kk[b], vr(GR[b]+2, 2), vr(GR[b], 2), vr(MO, 4))
        for b in range(5):
            A.wait(r2[b])
            for j in range(4):
                A(f"v_mul_f32 v1, v{AB2[b]+2*j+1}, v{vCSV}\nv_fma_f32 v{V[b]+j}, v{AB2[b]+2*j}, v{V[b]+j}, v1")
            A(f"v_cvt_pk_bf16_f32 v{VP+2*b}, v{V[b]}, v{V[b]+1}\nv_cvt_pk_bf16_f32 v{VP+2*b+1}, v{V[b]+2}, v{V[b]+3}")
        M = {b: SU[b] for b in range(1, 5)}
        for b in range(1, 5):
            s0, s1, m = Q[b], Kk[b], M[b]
            A(f"v_max3_f32 v{m}, v{s0}, v{s0+1}, v{s0+2}\nv_max3_f32 v{m+1}, v{s0+3}, v{s1}, v{s1+1}\nv_max3_f32 v{m}, v{m}, v{s1+2}, v{s1+3}\nv_max_f32 v{m}, v{m}, v{m+1}")
        for sw in ("v_permlane16_swap_b32", "v_permlane32_swap_b32"):
            for b in range(1, 5): A(f"v_mov_b32 v{M[b]+1}, v{M[b]}")
            for b in range(1, 5): A(f"{sw} v{M[b]}, v{M[b]+1}")
            for b in range(1, 5): A(f"v_max_f32 v{M[b]}, v{M[b]}, v{M[b]+1}")
        for b in range(1, 5):
            for s in (Q[b], Kk[b]):
                for j in range(4): A(f"v_sub_f32 v{s+j}, v{s+j}, v{M[b]}")
                for j in range(4): A(f"v_exp_f32 v{s+j}, v{s+j}")
            p = V[b]
            A(f"v_cvt_pk_bf16_f32 v{p}, v{Q[b]}, v{Q[b]+1}\nv_cvt_pk_bf16_f32 v{p+1}, v{Q[b]+2}, v{Q[b]+3}")
            A(f"v_cvt_pk_bf16_f32 v{p+2}, v{Kk[b]}, v{Kk[b]+1}\nv_cvt_pk_bf16_f32 v{p+3}, v{Kk[b]+2}, v{Kk[b]+3}")
        for b in range(1, 5):
            mfma16(A, Q[b], vr(vONE, 4), vr(V[b], 4), "0")
            mfma16(A, Kk[b], vr(VP + 2 * (b - 1), 4), vr(V[b], 4), "0")
        OP = XB[0][0]
        for b in range(1, 5): A(f"v_rcp_f32 v{Q[b]}, v{Q[b]}")
        for b in range(1, 5):
            for j in range(4): A(f"v_mul_f32 v{Kk[b]+j}, v{Kk[b]+j}, v{Q[b]}")
            o = OP + 2 * (b - 1)
            A(f"v_cvt_pk_bf16_f32 v{o}, v{Kk[b]}, v{Kk[b]+1}\nv_cvt_pk_bf16_f32 v{o+1}, v{Kk[b]+2}, v{Kk[b]+3}")
        A(f"s_lshl_b32 {sT0}, {sRB}, 16\ns_lshl_b32 {sT1}, {sHG}, 12\ns_add_u32 {sT0}, {sT0}, {sT1}\ns_lshl_b32 {sT1}, {sW}, 10\ns_add_u32 {sT0}, {sT0}, {sT1}")
        A(f"s_add_u32 {sT0}, {sT0}, {WS_O(L)}\ns_add_u32 {sT1}, {sT0}, 32768")
        toks = []
        for pr in range(2):
            o = OP + 4 * pr
            A(f"v_permlane32_swap_b32 v{o}, v{o+2}\nv_permlane32_swap_b32 v{o+1}, v{o+3}")
            toks.append(A(f"buffer_store_dwordx4 {vr(o,4)}, v{vOST}, {srd(S_WS)}, {sT0 if pr == 0 else sT1} offen sc1"))
        self.signal(toks + [self.wotok], vSIG1, "0xff", 4 * L + 0, first=(L == 0))

    def stage_begin(self, which):
        A = self.A
        if which == "w1":
            A(f"s_mul_i32 {sT0}, {sW}, {512*3584}\ns_lshl_b32 {sT1}, {sFT}, 7\ns_add_u32 s62, {sT0}, {sT1}")
            self.sg = dict(srd=S_W1, v=vDW1, stride=3584, n=32)
        else:
            A(f"s_mul_i32 {sT0}, {sW}, {448*4096}\ns_lshl_b32 {sT1}, {sST}, 7\ns_add_u32 s62, {sT0}, {sT1}")
            self.sg = dict(srd=S_W2, v=vDW2, stride=4096, n=28)
        self.sg.update(issued=0, read=0, dt={}, rt={})
    def stage_issue(self, upto=None):
        A = self.A; g = self.sg
        lim = min(g["n"], upto if upto is not None else g["n"])
        while g["issued"] < lim and g["issued"] < g["read"] + RING_SLOTS:
            i = g["issued"]
            if i >= RING_SLOTS: A.wait(g["rt"][i - RING_SLOTS])
            for hf in range(2):
                g["dt"][i] = dma(A, g["srd"], g["v"], "s62", (16 * i + 8 * hf) * g["stride"], sRING, (i % RING_SLOTS) * 2048 + hf * 1024)
            g["issued"] += 1
    def stage_run(self, upto, issue_upto=None):
        A = self.A; g = self.sg
        upto = min(upto, g["n"])
        self.stage_issue(issue_upto)
        while g["read"] < upto:
            i = g["read"]
            A.wait(g["dt"][i])
            off = (i % RING_SLOTS) * 2048
            for cb, vt in ((0, vTR0), (1, vTR1)):
                for hf in range(2):
                    g["rt"][i] = A(f"ds_read_b64_tr_b16 {ar(8*i+4*cb+2*hf, 2)}, v{vt} offset:{off + hf*1024}")
            g["read"] = i
            self.stage_issue(issue_upto)
            g["read"] = i + 1
    def stage_finish(self):
        g = self.sg
        self.stage_run(g["n"]); self.A.wait(g["rt"][g["n"] - 1])

    def p2(self, L):
        A = self.A
        R = Alloc()
        WOF = R.get(128); ACC = R.get(16); OB = [R.get(4) for _ in range(6)]
        XR = R.get(8); T = R.get(16); SP = R.get(16)
        l = vLANE
        for kb in range(32):
            for hf in range(2):
                t = A(f"ds_read_b64_tr_b16 {vr(WOF+4*kb+2*hf, 2)}, v{vTWO} offset:{kb*2048 + hf*1024}")
        A(f"s_lshl_b32 {sT0}, {sRB}, 1\ns_add_u32 {sT0}, {sT0}, {sWB}\ns_lshl_b32 {sT0}, {sT0}, 15")
        A(f"s_lshl_b32 {sT1}, {sHG}, 1\ns_add_u32 {sT1}, {sT1}, {sWA}")
        A(f"s_lshl_b32 {sT2}, {sT1}, 10\ns_add_u32 s63, {sT0}, {sT2}")
        if L == 0:
            A(f"s_lshl_b32 {sT2}, {sT1}, 6\ns_add_u32 {sT2}, {sT0}, {sT2}")
            A(f"v_and_b32 v1, 31, v{l}\nv_lshlrev_b32 v1, 10, v1\nv_lshrrev_b32 v2, 5, v{l}\nv_lshl_add_u32 v1, v2, 3, v1")
            for q in range(4):
                xr = A(f"buffer_load_dwordx2 {vr(XR+2*q,2)}, v1, {srd(S_AX)}, {sT2} offen offset:{16*q}")
        else:
            A(f"s_add_u32 {sT2}, s63, {WS_X2(L-1)}")
            for p in range(2):
                xr = A(f"buffer_load_dwordx4 {vr(XR+4*p,4)}, v{vXL}, {srd(S_WS)}, {sT2} offen offset:{512*p} sc1")
        A.wait(t); A("s_barrier")
        skip = A.newlabel("L_now1")
        A(f"s_cmp_ge_u32 {sJ}, 28\ns_cbranch_scc1 {skip}")
        self.stage_begin("w1"); self.stage_run(self.n1, issue_upto=self.n1)
        A.wait(self.sg["rt"][self.n1 - 1])
        A.label(skip)
        A("s_waitcnt vmcnt(0)", kind="syncvm")
        self.poll(4 * L + 0, 8)
        A(f"s_lshl_b32 {sT0}, {sWB}, 15\ns_lshl_b32 {sT1}, {sWA}, 12\ns_add_u32 {sT5}, {sT0}, {sT1}")
        A(f"s_lshl_b32 {sT0}, {sRB}, 16\ns_add_u32 {sB0}, {sT0}, {sT5}")
        ot = []
        for c in range(4):
            for i in range(4):
                if i == 0: t = dma(A, S_WS, vL16, sB0, WS_O(L) + c * 8192, sT5, LDS_A + c * 8192, flags="sc1")
                else: t = A(f"buffer_load_dwordx4 v{vL16}, {srd(S_WS)}, {sT7} offen offset:{i*1024} sc1 lds")
            ot.append(t)
        A(f"s_lshl_b32 {sT0}, {sWB}, 15\nv_add_u32 v2, {sT0}, v{vL16}")
        rt = {}
        def rd(kb): rt[kb] = A(f"ds_read_b128 {vr(OB[kb % 6],4)}, v2 offset:{LDS_A + kb*1024}")
        nxt = 0
        for c in range(4):
            A.wait(ot[c]); A("s_barrier")
            for kb in range(8 * c, 8 * c + 8):
                while nxt < min(kb + 5, 8 * c + 8): rd(nxt); nxt += 1
                A.wait(rt[kb])
                mfma32(A, ACC, vr(WOF + 4 * kb, 4), vr(OB[kb % 6], 4), vr(ACC, 16) if kb else "0")
        A.wait(xr)
        for i in range(8):
            A(f"v_lshlrev_b32 v{T+2*i}, 16, v{XR+i}\nv_and_b32 v{T+2*i+1}, 0xffff0000, v{XR+i}")
        for j in range(16): A(f"v_add_f32 v{T+j}, v{T+j}, v{ACC+j}")
        for i in range(8): A(f"v_cvt_pk_bf16_f32 v{XR+i}, v{T+2*i}, v{T+2*i+1}")
        for i in range(8):
            A(f"v_lshlrev_b32 v{T+2*i}, 16, v{XR+i}\nv_and_b32 v{T+2*i+1}, 0xffff0000, v{XR+i}")
        A(f"v_add_f32 v4, v{T}, v{T+1}\nv_mul_f32 v5, v{T}, v{T}\nv_add_f32 v6, v{T+2}, v{T+3}\nv_mul_f32 v7, v{T+1}, v{T+1}")
        A(f"v_fmac_f32 v5, v{T+2}, v{T+2}\nv_fmac_f32 v7, v{T+3}, v{T+3}")
        for j in range(4, 16, 2):
            A(f"v_add_f32 v4, v4, v{T+j}\nv_fmac_f32 v5, v{T+j}, v{T+j}\nv_add_f32 v6, v6, v{T+j+1}\nv_fmac_f32 v7, v{T+j+1}, v{T+j+1}")
        A("v_add_f32 v4, v4, v6\nv_add_f32 v5, v5, v7\nv_mov_b32 v6, v4\nv_mov_b32 v7, v5")
        A("v_permlane32_swap_b32 v4, v6\nv_permlane32_swap_b32 v5, v7")
        A("v_add_f32 v4, v4, v6\nv_add_f32 v5, v5, v7\nv_and_b32 v5, 0x7fffffff, v5")
        self.st_slot(sT0)
        A(f"s_add_u32 {sT0}, {sT0}, {WS_ST[L]}")
        A(f"v_and_b32 v1, 31, v{l}\nv_lshlrev_b32 v1, 3, v1")
        A("s_mov_b32 exec_hi, 0")
        A(f"buffer_store_dwordx2 v[4:5], v1, {srd(S_WS)}, {sT0} offen sc1")
        A("s_mov_b32 exec_hi, -1")
        A(f"s_add_u32 {sT2}, s63, {WS_X1(L)}")
        toks = []
        for p in range(2):
            toks.append(A(f"buffer_store_dwordx4 {vr(XR+4*p,4)}, v{vXL}, {srd(S_WS)}, {sT2} offen offset:{512*p} sc1"))
        A(f"s_lshl_b32 {sT0}, {sRB}, 1\ns_add_u32 {sT0}, {sT0}, {sWB}\ns_lshl_b32 {sT0}, {sT0}, 12\ns_add_u32 {sT0}, {sT0}, {WS_ST[L]}")
        A(f"v_lshrrev_b32 v2, 5, v{l}\nv_lshl_add_u32 v2, v2, 11, v1")
        lp = A.newlabel("L_st")
        A(f"s_mov_b32 {sSPIN}, 0")
        A.label(lp)
        for c in range(8):
            A(f"buffer_load_dwordx2 {vr(SP+2*c,2)}, v2, {srd(S_WS)}, {sT0} offen offset:{256*c} sc1", uncounted=True)
        A(f"s_add_u32 {sSPIN}, {sSPIN}, 1\ns_cmp_gt_u32 {sSPIN}, 0x8000\ns_cbranch_scc1 {lp}_x")
        A("s_waitcnt vmcnt(0)")
        A(f"v_or3_b32 v3, v{SP+1}, v{SP+3}, v{SP+5}\nv_or3_b32 v4, v{SP+7}, v{SP+9}, v{SP+11}\nv_or3_b32 v3, v3, v{SP+13}, v{SP+15}\nv_or_b32 v3, v3, v4")
        A(f"v_cmp_gt_i32 vcc, 0, v3\ns_cbranch_vccnz {lp}")
        A.label(lp + "_x")
        A("s_waitcnt vmcnt(0)", kind="syncvm")
        for st in (8, 4, 2):
            for i in range(st): A(f"v_add_f32 v{SP+i}, v{SP+i}, v{SP+st+i}")
        A(f"v_mov_b32 v6, v{SP}\nv_mov_b32 v7, v{SP+1}")
        A(f"v_permlane32_swap_b32 v{SP}, v6\nv_permlane32_swap_b32 v{SP+1}, v7")
        A(f"v_add_f32 v4, v{SP}, v6\nv_add_f32 v5, v{SP+1}, v7")
        A(f"v_mul_f32 v4, {hex(f2u(1/512))}, v4\nv_mul_f32 v5, {hex(f2u(1/512))}, v5")
        A("v_fma_f32 v5, -v4, v4, v5\nv_max_f32 v5, 0, v5")
        A(f"v_add_f32 v6, {hex(f2u(1e-5))}, v5\nv_rsq_f32 v6, v6")
        A(f"v_mul_f32 v7, v6, v6\nv_mul_f32 v7, v7, v5\nv_add_f32 v7, {hex(f2u(1e-5))}, v7\nv_rsq_f32 v7, v7")
        A("v_mul_f32 v6, v6, v7\nv_mul_f32 v7, v4, v6\nv_sub_f32 v7, 0, v7")
        for j in range(16): A(f"v_fma_f32 v{T+j}, v{T+j}, v6, v7")
        for i in range(8): A(f"v_cvt_pk_bf16_f32 v{SP+i}, v{T+2*i}, v{T+2*i+1}")
        A(f"s_mul_i32 {sT0}, {sW}, 2304\ns_add_u32 {sT0}, {sT0}, {LDS_MISC}")
        A(f"v_and_b32 v1, 31, v{l}\nv_mul_u32_u24 v1, 72, v1\nv_lshrrev_b32 v2, 5, v{l}\nv_lshl_add_u32 v1, v2, 3, v1\nv_add_u32 v1, {sT0}, v1")
        A(f"v_bfe_u32 v3, v{l}, 2, 2\nv_lshl_add_u32 v3, v2, 2, v3\nv_mul_u32_u24 v3, 72, v3\nv_bfe_u32 v4, v{l}, 4, 1\nv_lshl_add_u32 v3, v4, 5, v3\nv_and_b32 v4, 3, v{l}\nv_lshl_add_u32 v3, v4, 3, v3\nv_add_u32 v3, {sT0}, v3")
        wt = [A(f"ds_write_b64 v1, {vr(SP+2*q,2)} offset:{16*q}") for q in range(4)]
        A.wait(*wt)
        rr = [A(f"ds_read_b64_tr_b16 {vr(T+2*i,2)}, v3 offset:{i*8*72}") for i in range(4)]
        A(f"s_lshl_b32 {sT0}, {sHG}, 1\ns_add_u32 {sT0}, {sT0}, {sWA}\ns_lshl_b32 {sT0}, {sT0}, 7\ns_lshl_b32 {sT1}, {sRB}, 2\ns_add_u32 {sT0}, {sT0}, {sT1}\ns_lshl_b32 {sT1}, {sWB}, 1\ns_add_u32 {sT0}, {sT0}, {sT1}\ns_lshl_b32 {sT0}, {sT0}, 10\ns_add_u32 {sT0}, {sT0}, {WS_H(L)}")
        for p in range(2):
            A.wait(rr[2 * p + 1])
            toks.append(A(f"buffer_store_dwordx4 {vr(T+4*p,4)}, v{vL16}, {srd(S_WS)}, {sT0} offen offset:{1024*p} sc1"))
        self.signal(toks, vSIG2, "-1", 4 * L + 1)

    def kmain(self, R, n, base_expr, kblocks, w_is_A):
        A = self.A
        ACC = R.get(64, 4)
        NB = 16
        BUF = R.get(8 * NB, 4)
        A(f"s_lshl_b32 {sT0}, {sDT3}, 1\ns_add_u32 {sT0}, {sT0}, {sWB}\ns_xor_b32 {sT1}, {sT0}, 1")
        A(f"s_mul_i32 {sT2}, {sW}, {n*1024}\ns_add_u32 {sT2}, {sT2}, {base_expr}")
        A(f"s_mul_i32 {sT0}, {sT0}, {kblocks*1024}\ns_mul_i32 {sT1}, {sT1}, {kblocks*1024}\ns_add_u32 {sB0}, {sT0}, {sT2}\ns_add_u32 {sB1_}, {sT1}, {sT2}")
        lt = {}
        def ld(i):
            if i and i % 4 == 0: A(f"s_add_u32 {sB0}, {sB0}, 4096\ns_add_u32 {sB1_}, {sB1_}, 4096")
            for s in range(2):
                lt[(i, s)] = A(f"buffer_load_dwordx4 {vr(BUF + 8*(i % NB) + 4*s, 4)}, v{vL16}, {srd(S_WS)}, {sB0 if s == 0 else sB1_} offen offset:{(i % 4)*1024} sc1")
        def body():
            for i in range(min(NB, n)): ld(i)
            for i in range(n):
                for s in range(2):
                    A.wait(lt[(i, s)])
                    for ws in range(2):
                        acc = ACC + 16 * (2 * ws + s)
                        w = ar(8 * i + 4 * ws, 4); x = vr(BUF + 8 * (i % NB) + 4 * s, 4)
                        c = vr(acc, 16) if i else "0"
                        if w_is_A: mfma32(A, acc, w, x, c)
                        else: mfma32(A, acc, x, w, c)
                if i + NB < n: ld(i + NB)
        return ACC, BUF, body
    def reduce(self, ACC, BUF):
        A = self.A
        wt = []
        for i in range(1, 4):
            for q in range(4):
                wt.append(A(f"ds_write_b128 v{vRW+i-1}, {vr(ACC+16*i+4*q,4)} offset:{q*1024}"))
        A.wait(*wt); A("s_barrier")
        rr = [A(f"ds_read_b128 {vr(BUF+4*k,4)}, v{vRR} offset:{k*1024}") for k in range(12)]
        for i in range(3):
            for q in range(4):
                A.wait(rr[4 * i + q])
                for j in range(4): A(f"v_add_f32 v{ACC+4*q+j}, v{ACC+4*q+j}, v{BUF+16*i+4*q+j}")

    def p3(self, L):
        A = self.A
        R = Alloc()
        BI = R.get(8)
        skip = A.newlabel("L_nop3")
        A(f"s_cmp_ge_u32 {sJ}, 28\ns_cbranch_scc1 {skip}")
        A(f"s_lshl_b32 {sT0}, {sFT}, 7\ns_lshl_b32 {sT1}, {sWA}, 6\ns_add_u32 {sT0}, {sT0}, {sT1}")
        A(f"v_lshrrev_b32 v2, 5, v{vLANE}\nv_lshlrev_b32 v2, 3, v2")
        for q in range(4): bt = A(f"buffer_load_dwordx2 {vr(BI+2*q,2)}, v2, {srd(S_B1)}, {sT0} offen offset:{16*q}")
        self.stage_finish()
        ACC, BUF, body = self.kmain(R, 32, WS_H(L), 128, True)
        self.poll(4 * L + 1, 32)
        body()
        self.stage_begin("w2"); self.stage_issue()
        self.reduce(ACC, BUF)
        A.wait(bt)
        T = BUF
        for i in range(8):
            A(f"v_lshlrev_b32 v{T+2*i}, 16, v{BI+i}\nv_and_b32 v{T+2*i+1}, 0xffff0000, v{BI+i}")
        for j in range(16): A(f"v_add_f32 v{ACC+j}, v{ACC+j}, v{T+j}")
        c1 = -2.0 * 0.7978845608028654 * 1.4426950408889634
        c3 = c1 * 0.044715
        A(f"v_mov_b32 v2, {hex(f2u(c1))}")
        for j in range(16): A(f"v_mul_f32 v{T+j}, v{ACC+j}, v{ACC+j}")
        for j in range(16): A(f"v_fmamk_f32 v{T+j}, v{T+j}, {hex(f2u(c3))}, v2")
        for j in range(16): A(f"v_mul_f32 v{T+j}, v{T+j}, v{ACC+j}")
        for j in range(16): A(f"v_exp_f32 v{T+j}, v{T+j}")
        for j in range(16): A(f"v_add_f32 v{T+j}, 1.0, v{T+j}")
        for j in range(16): A(f"v_rcp_f32 v{T+j}, v{T+j}")
        for j in range(16): A(f"v_mul_f32 v{T+j}, v{T+j}, v{ACC+j}")
        for i in range(8): A(f"v_cvt_pk_bf16_f32 v{BI+i}, v{T+2*i}, v{T+2*i+1}")
        A(f"s_lshl_b32 {sT0}, {sDT3}, 1\ns_add_u32 {sT0}, {sT0}, {sWB}\ns_mul_i32 {sT0}, {sT0}, 112\ns_lshl_b32 {sT1}, {sFT}, 2\ns_add_u32 {sT0}, {sT0}, {sT1}\ns_lshl_b32 {sT1}, {sWA}, 1\ns_add_u32 {sT0}, {sT0}, {sT1}\ns_lshl_b32 {sT0}, {sT0}, 10\ns_add_u32 {sT0}, {sT0}, {WS_U(L)}")
        toks = [A(f"buffer_store_dwordx4 {vr(BI+4*p,4)}, v{vL16}, {srd(S_WS)}, {sT0} offen offset:{1024*p} sc1") for p in range(2)]
        self.signal(toks, vSIG3, "-1", 4 * L + 2)
        join = A.newlabel("L_j3")
        A(f"s_branch {join}")
        A.label(skip)
        sv = self.sg
        n0 = len(A.L)
        self.stage_begin("w2"); self.stage_issue()
        for i in A.L[n0:]:
            if i.kind == "vm": i.uncounted = True
        A("s_waitcnt vmcnt(0)")
        self.sg = sv
        A.label(join)

    def p4(self, L, last):
        A = self.A
        R = Alloc()
        XR = R.get(8); l = vLANE
        A(f"s_lshl_b32 {sT0}, {sST}, 7\ns_lshl_b32 {sT1}, {sWA}, 6\ns_add_u32 {sT0}, {sT0}, {sT1}")
        A(f"v_and_b32 v2, 31, v{l}\nv_lshlrev_b32 v2, 1, v2")
        bt = A(f"buffer_load_ushort v7, v2, {srd(S_B2)}, {sT0} offen")
        self.stage_finish()
        ACC, BUF, body = self.kmain(R, 28, WS_U(L), 112, False)
        A(f"s_lshl_b32 {sT0}, {sST}, 1\ns_add_u32 {sT0}, {sT0}, {sWA}\ns_lshl_b32 {sT0}, {sT0}, 15\ns_lshl_b32 {sT1}, {sDT3}, 1\ns_add_u32 {sT1}, {sT1}, {sWB}")
        A(f"s_lshl_b32 {sT2}, {sT1}, 10\ns_add_u32 s63, {sT0}, {sT2}\ns_lshl_b32 {sT2}, {sT1}, 6\ns_add_u32 s64, {sT0}, {sT2}\ns_add_u32 {sT3}, s63, {WS_X1(L)}")
        self.poll(4 * L + 2, 28)
        for p in range(2):
            xr = A(f"buffer_load_dwordx4 {vr(XR+4*p,4)}, v{vXL}, {srd(S_WS)}, {sT3} offen offset:{512*p} sc1")
        body()
        self.reduce(ACC, BUF)
        T = BUF
        A.wait(bt, xr)
        A("v_lshlrev_b32 v7, 16, v7")
        for i in range(8):
            A(f"v_lshlrev_b32 v{T+2*i}, 16, v{XR+i}\nv_and_b32 v{T+2*i+1}, 0xffff0000, v{XR+i}")
        for j in range(16): A(f"v_add_f32 v{ACC+j}, v{ACC+j}, v7")
        for j in range(16): A(f"v_add_f32 v{T+j}, v{T+j}, v{ACC+j}")
        for i in range(8): A(f"v_cvt_pk_bf16_f32 v{XR+i}, v{T+2*i}, v{T+2*i+1}")
        if not last:
            A(f"s_add_u32 {sT3}, s63, {WS_X2(L)}")
            toks = [A(f"buffer_store_dwordx4 {vr(XR+4*p,4)}, v{vXL}, {srd(S_WS)}, {sT3} offen offset:{512*p} sc1") for p in range(2)]
            self.signal(toks, vSIG4, sE4M, 4 * L + 3)
        else:
            A(f"v_and_b32 v1, 31, v{l}\nv_lshlrev_b32 v1, 10, v1\nv_lshrrev_b32 v2, 5, v{l}\nv_lshl_add_u32 v1, v2, 4, v1")
            for p in range(2):
                o = XR + 4 * p
                A(f"v_permlane32_swap_b32 v{o}, v{o+2}\nv_permlane32_swap_b32 v{o+1}, v{o+3}")
                A(f"buffer_store_dwordx4 {vr(o,4)}, v1, {srd(S_OUT)}, s64 offen offset:{32*p}")

    def build(self):
        A = self.A
        self.prologue()
        n = 0
        for L in range(2):
            for ph in range(4):
                A.comment(f"======== layer {L} phase {ph+1}")
                if ph == 0: self.stage_wqkv(L); self.p1(L)
                if ph == 1: self.p2(L)
                if ph == 2: self.p3(L)
                if ph == 3: self.p4(L, L == 1)
                n += 1
                if self.stop == n: break
            if self.stop == n: break
        A.label("L_end")
        A("s_endpgm")
        head = open(f"cdna_kernels/{NAME}.s.ref").read().split("; Override launch")[0]
        out = head + f"; @launch grid=(256,1,1) block=(256,1,1) lds={LDS_TOTAL}\n"
        out += f'.amdgcn_target "amdgcn-amd-amdhsa--gfx950"\n.text\n.globl {NAME}_kernel\n.p2align 8\n.type {NAME}_kernel,@function\n{NAME}_kernel:\n'
        out += A.text()
        out += f""".section .rodata,"a"
.p2align 6
.amdhsa_kernel {NAME}_kernel
  .amdhsa_next_free_vgpr 512
  .amdhsa_next_free_sgpr 102
  .amdhsa_accum_offset 256
  .amdhsa_group_segment_fixed_size 0
  .amdhsa_kernarg_size 88
  .amdhsa_user_sgpr_count 2
  .amdhsa_user_sgpr_kernarg_segment_ptr 1
  .amdhsa_system_sgpr_workgroup_id_x 1
.end_amdhsa_kernel
"""
        return out

if __name__ == "__main__":
    import argparse
    ap = argparse.ArgumentParser()
    ap.add_argument("-o", default=f"cdna_kernels/{NAME}.s")
    ap.add_argument("--stop", type=int, default=None)
    ap.add_argument("--poll", default="all")
    ap.add_argument("--n1", type=int, default=14)
    a = ap.parse_args()
    open(a.o, "w").write(Gen(stop=a.stop, pollmode=a.poll, n1=a.n1).build())
```
